```python
import torch

def _softmax(x, axis=-1):
    return torch.softmax(x, dim=axis)
def _gelu(x):
    return torch.nn.functional.gelu(x, approximate="tanh")
def _silu(x):
    return torch.nn.functional.silu(x)
def _sigmoid(x):
    return torch.sigmoid(x)
def _layernorm(x, axis=-1, eps=1e-5):
    m = x.mean(dim=axis, keepdim=True)
    v = x.var(dim=axis, keepdim=True, unbiased=False)
    return (x - m) / torch.sqrt(v + eps)
def _scatter_add(tgt, idx, src, axis=0):
    return tgt.clone().index_add_(axis, idx, src)
def _segment_sum(src, seg, n):
    out = torch.zeros((n,) + src.shape[1:], dtype=src.dtype)
    return out.index_add_(0, seg, src)
def _pad(x, pw):
    flat = tuple(v for pair in reversed(pw) for v in pair)
    return torch.nn.functional.pad(x, flat)

kernel_name = 'parallel_sum__mha_block_cached__swiglu_ffn__decode'

def setup_inputs():

    _w = (lambda a: (lambda t: t.to(torch.bfloat16) if t.is_floating_point() else t)(torch.as_tensor(a)))
    def _A_setup():
        B, Sq, D = 4, 1, 640
        H, Sk, Dh = 32, 4096, 128
        return {
            "x": _w((lambda *s: torch.randn(*s, dtype=torch.bfloat16) * 0.05)(B, Sq, D)),
            "k_cache": _w((lambda *s: torch.randn(*s, dtype=torch.bfloat16) * 3.2)(B, H, Sk, Dh)),
            "v_cache": _w((lambda *s: torch.randn(*s, dtype=torch.bfloat16) * 1.6)(B, H, Sk, Dh)),
            "wq": _w((lambda *s: torch.randn(*s, dtype=torch.bfloat16) * 3.2)(D, H * Dh) * (D ** -0.5)),
            "wo": _w((lambda *s: torch.randn(*s, dtype=torch.bfloat16) * 1.6)(H * Dh, D) * ((H * Dh) ** -0.5)),
        }
    _A_in = _A_setup()

    def _B_setup():
        B, S, D, F = 4, 1, 640, 1728
        return {
            "x": _w((lambda *s: torch.randn(*s, dtype=torch.bfloat16) * 0.05)(B, S, D)),
            "w_gate": _w((lambda *s: torch.randn(*s, dtype=torch.bfloat16) * 0.05)(D, F)),
            "w_up": _w((lambda *s: torch.randn(*s, dtype=torch.bfloat16) * 0.05)(D, F)),
            "w_down": _w((lambda *s: torch.randn(*s, dtype=torch.bfloat16) * 0.05)(F, D)),
        }
    _B_in = _B_setup()

    return {
        "A_x": _A_in["x"],
        "A_k_cache": _A_in["k_cache"],
        "A_v_cache": _A_in["v_cache"],
        "A_wq": _A_in["wq"],
        "A_wo": _A_in["wo"],
        "B_x": _B_in["x"],
        "B_w_gate": _B_in["w_gate"],
        "B_w_up": _B_in["w_up"],
        "B_w_down": _B_in["w_down"],
    }

def reference(A_x, A_k_cache, A_v_cache, A_wq, A_wo, B_x, B_w_gate, B_w_up, B_w_down):
    def _A_ref(x, k_cache, v_cache, wq, wo):
        B, Sq, D = x.shape
        H, Dh = 32, 128
        q = (lambda x, *d: x.permute(*d))((x @ wq).reshape(B, Sq, H, Dh), 0, 2, 1, 3)
        scores = torch.einsum("bhqd,bhkd->bhqk", q, k_cache) * (Dh ** -0.5)
        p = _softmax(scores, axis=-1)
        o = torch.einsum("bhqk,bhkd->bhqd", p, v_cache)
        return (lambda x, *d: x.permute(*d))(o, 0, 2, 1, 3).reshape(B, Sq, H * Dh) @ wo

    def _B_ref(x, w_gate, w_up, w_down):
        g = _silu(x @ w_gate)
        u = x @ w_up
        return (g * u) @ w_down

    x = A_x
    xn = _layernorm(x, axis=-1)
    return x + _A_ref(xn, A_k_cache, A_v_cache, A_wq, A_wo) + _B_ref(xn, B_w_gate, B_w_up, B_w_down)
```

```python
import re

TRANS = ("v_exp_f32", "v_log_f32", "v_rcp_f32", "v_rsq_f32", "v_sqrt_f32", "v_sin_f32", "v_cos_f32")
REG_RE = re.compile(r"^(-?)(?:abs\()?([vas])(?:(\d+)|\[(\d+):(\d+)\])\)?$")


def regs_of(op):
    op = op.strip()
    if op in ("vcc",):
        return ["vcc_lo", "vcc_hi"]
    if op in ("exec",):
        return ["exec_lo", "exec_hi"]
    if op in ("vcc_lo", "vcc_hi", "exec_lo", "exec_hi", "m0", "scc"):
        return [op]
    m = REG_RE.match(op)
    if not m:
        return []
    k = m.group(2)
    if m.group(3) is not None:
        return [f"{k}{m.group(3)}"]
    return [f"{k}{i}" for i in range(int(m.group(4)), int(m.group(5)) + 1)]


def split_ops(s):
    out, depth, cur = [], 0, ""
    for ch in s:
        if ch in "[(":
            depth += 1
        if ch in "])":
            depth -= 1
        if ch == "," and depth == 0:
            out.append(cur.strip())
            cur = ""
        else:
            cur += ch
    if cur.strip():
        out.append(cur.strip())
    return out


class Ins:
    __slots__ = ("text", "kind", "w", "r", "dpp", "trans", "srcc", "ab", "ws", "wide_store", "lanerd", "dtuple", "ctuple")


def parse(text):
    t = text.split(";")[0].strip()
    ins = Ins()
    ins.text = text
    ins.w, ins.r, ins.dpp, ins.srcc, ins.ab = set(), set(), set(), set(), set()
    ins.trans = False
    ins.ws = 1
    ins.wide_store = set()
    ins.lanerd = set()
    ins.dtuple = ins.ctuple = None
    mn, _, rest = t.partition(" ")
    ops = split_ops(rest)
    clean = []
    for o in ops:
        clean.append(o.split(" ")[0])
    ops = clean
    allr = lambda lst: set(x for o in lst for x in regs_of(o))
    if mn == "s_nop":
        ins.kind = "salu"
        ins.ws = int(ops[0], 0) + 1
    elif mn.startswith("v_mfma"):
        ins.kind = "mfma"
        ins.w = allr(ops[:1])
        ins.ab = allr(ops[1:3])
        ins.srcc = allr(ops[3:4])
        ins.r = ins.ab | ins.srcc
        ins.dtuple, ins.ctuple = ops[0], ops[3]
    elif mn.startswith("v_"):
        ins.kind = "valu"
        nd = 1
        if mn.startswith(("v_add_co", "v_addc_co", "v_sub_co", "v_subb_co")):
            nd = 2
        ins.w = allr(ops[:nd])
        ins.r = allr(ops[nd:])
        if mn.startswith(("v_fmac", "v_dot2c")) or "_dpp" in mn:
            ins.r |= allr(ops[:1])
        if mn.startswith("v_permlane"):
            ins.w = allr(ops[:2]); ins.r = allr(ops[:2]); ins.dpp = set(ins.r)
        if "_dpp" in mn:
            ins.dpp = allr(ops[1:2])
        if mn.replace("_e32", "").replace("_e64", "") in TRANS:
            ins.trans = True
        if mn.startswith(("v_readlane", "v_readfirstlane")):
            ins.lanerd = allr(ops[1:2])
        if mn.startswith("v_cndmask") and len(ops) == 3:
            ins.r |= {"vcc_lo", "vcc_hi"}
    elif mn.startswith(("buffer_", "global_")):
        ins.kind = "vmem"
        if "load" in mn:
            ins.w = allr(ops[:1]); ins.r = allr(ops[1:])
            if "d16" in mn:
                ins.r |= ins.w
        elif "atomic" in mn:
            ins.r = allr(ops)
            if " sc0" in t:
                ins.w = allr(ops[:1])
        else:
            ins.r = allr(ops)
            if mn.endswith(("x3", "x4")):
                ins.wide_store = allr(ops[:1]) if mn.startswith("buffer_") else allr(ops[1:2])
    elif mn.startswith("ds_"):
        ins.kind = "ds"
        if "read" in mn or "bpermute" in mn or "swizzle" in mn:
            ins.w = allr(ops[:1]); ins.r = allr(ops[1:])
        else:
            ins.r = allr(ops)
            if mn.endswith(("b128", "b96")):
                ins.wide_store = allr(ops[1:2])
    elif mn.startswith("s_"):
        ins.kind = "salu"
        if mn.startswith(("s_load", "s_memtime", "s_memrealtime")):
            ins.kind = "smem"
            ins.w = allr(ops[:1]); ins.r = allr(ops[1:])
        elif mn.startswith(("s_cmp", "s_cbranch", "s_branch", "s_waitcnt", "s_barrier", "s_endpgm", "s_sleep", "s_setprio")):
            ins.r = allr(ops)
        else:
            ins.w = allr(ops[:1]); ins.r = allr(ops[1:])
            if "saveexec" in mn:
                ins.w |= {"exec_lo", "exec_hi"}
    else:
        raise ValueError("unknown instruction: " + text)
    return ins


def is_v(r):
    return r[0] in "va" and r[1:].isdigit()


def is_s(r):
    return not is_v(r)


def required(p, c):
    need = 0
    if p.kind == "valu":
        wv = {x for x in p.w if is_v(x)}
        wsg = {x for x in p.w if is_s(x)}
        if c.kind == "mfma" and wv & c.r:
            need = max(need, 2)
        if c.kind == "valu" and wv & c.dpp:
            need = max(need, 2)
        if c.kind == "valu" and wv & c.lanerd:
            need = max(need, 1)
        if p.trans and c.kind != "salu" and wv & c.r:
            need = max(need, 1)
        if wsg:
            if c.kind == "vmem" and wsg & c.r:
                need = max(need, 5)
            if c.kind == "valu" and wsg & c.r:
                need = max(need, 4 if c.lanerd else 2)
            if c.kind in ("salu", "smem") and wsg & c.r:
                need = max(need, 1)
    elif p.kind == "mfma":
        if c.kind == "mfma":
            if p.w & c.ab:
                need = max(need, 8)
            if p.w & c.srcc and p.dtuple != c.ctuple:
                need = max(need, 6)
            if p.w & c.w and not (p.dtuple == c.ctuple):
                need = max(need, 6)
        elif c.kind in ("valu", "vmem", "ds"):
            if p.w & (c.r | c.w):
                need = max(need, 8)
            if c.kind == "valu" and p.srcc & c.w:
                need = max(need, 3)
    if p.wide_store and c.kind in ("valu", "mfma") and p.wide_store & c.w:
        need = max(need, 2)
    return need


class Asm:
    def __init__(self):
        self.lines = []
        self.hist = []
        self.vm_issued = 0
        self.vm_done = 0
        self.nops = 0

    def raw(self, text):
        self.lines.append(text)

    def label(self, name):
        self.lines.append(name + ":")

    def comment(self, text):
        self.lines.append("    ; " + text)

    def __call__(self, text):
        ins = parse(text)
        dist = 0
        need = 0
        for p in reversed(self.hist):
            n = required(p, ins)
            if n - dist > need:
                need = n - dist
            dist += p.ws
            if dist >= 12:
                break
        if need > 0:
            nop = parse(f"s_nop {need - 1}")
            self.lines.append(f"    s_nop {need - 1}")
            self.hist.append(nop)
            self.nops += need
        self.lines.append("    " + text)
        self.hist.append(ins)
        self.hist = self.hist[-16:]
        if ins.kind == "vmem":
            self.vm_issued += 1
            return self.vm_issued - 1
        return None

    def wait_vm(self, idx):
        if idx < self.vm_done:
            return
        n = self.vm_issued - 1 - idx
        self(f"s_waitcnt vmcnt({min(n, 63)})")
        self.vm_done = max(self.vm_done, self.vm_issued - min(n, 63))

    def wait_lgkm(self, n=0):
        self(f"s_waitcnt lgkmcnt({n})")

    def text(self):
        return "\n".join(self.lines) + "\n"
```

```python
import sys
from asmlib import Asm

KN = "parallel_sum__mha_block_cached__swiglu_ffn__decode_kernel"
K2N = "combine_kernel"
HEADER = open("parallel_sum__mha_block_cached__swiglu_ffn__decode.s.ref").read().split("; Override")[0]

DPPF = "row_mask:0xf bank_mask:0xf"
Y_BYTES = 256 * 1280 * 4
ML_OFF = Y_BYTES
WS_BYTES = ML_OFF + 256 * 8
STAMP_OFF = 4 << 20

L_QP = 0
L_GU = 4096
L_MX = 8192
L_LS = 8256
L_OP = 8448
L_YP = 10496
LDS_BYTES = L_YP + 4 * 5120


def f32bits(x):
    import struct
    return struct.unpack("<I", struct.pack("<f", x))[0]


class VAlloc:
    def __init__(self, start):
        self.n = start

    def __call__(self, k=1, align=1):
        self.n = (self.n + align - 1) // align * align
        r = self.n
        self.n += k
        return r


def tup(r, k=4, f="v"):
    return f"{f}[{r}:{r + k - 1}]"


def gen_k1(A, P):
    D = P.get("D", 18)
    stamps = P.get("stamps", False)
    va = VAlloc(1)
    vL, vG, vI = va(), va(), va()
    vKo, vVo, vQo, vGo, vWOo, vWDo, vXs, vXe = (va() for _ in range(8))
    vT, vT2, vT3 = va(), va(), va()
    vMax, vML, vLs, vMean, vSd, vRs = (va() for _ in range(6))
    vAq, vAo, vAy = va(), va(), va()
    M = va(4, 4)
    X = va(4, 4)
    AA = [va(4, 4), va(4, 4)]
    Bq = va(16, 4)
    Dq = va(8, 4)
    Dg = va(8, 4)
    Ds = [va(4, 4), va(4, 4)]
    Do = va(4, 4)
    Dy = va(20, 4)
    S = va(32, 4)
    TM = va(16, 4)
    first_slot = va(0, 4)
    slots = [f"a[{i}:{i + 3}]" for i in range(0, 256, 4)] + [tup(r) for r in range(first_slot, 253, 4)]
    nslots0 = len(slots)

    sX, sK, sV, sWQ, sWO, sWG, sWU, sWD, sWS = (f"s[{i}:{i + 3}]" for i in range(4, 40, 4))
    A(f"s_cmp_ge_u32 s2, 256")
    A("s_cbranch_scc1 L_k1_end")
    if stamps:
        A("s_memrealtime s[70:71]")
    for i, off in enumerate((0, 8, 16, 24, 32, 48, 56, 64, 88)):
        A(f"s_load_dwordx2 s[{4 + 4 * i}:{5 + 4 * i}], s[0:1], {off}")
    sizes = (4 * 640 * 2, 128 << 20, 128 << 20, 640 * 4096 * 2, 640 * 4096 * 2, 640 * 1728 * 2, 640 * 1728 * 2, 640 * 1728 * 2,
             (8 << 20) if stamps else WS_BYTES)
    A(f"v_lshrrev_b32 v{vT}, 6, v0")
    A(f"v_and_b32 v{vL}, 63, v0")
    A(f"v_readfirstlane_b32 s40, v{vT}")
    for i, n in enumerate(sizes):
        A(f"s_mov_b32 s{6 + 4 * i}, {n}")
        A(f"s_mov_b32 s{7 + 4 * i}, 0x20000")
    A("s_and_b32 s41, s2, 7"); A("s_lshl_b32 s41, s41, 2"); A("s_bfe_u32 s3, s2, 0x20003"); A("s_add_u32 s41, s41, s3")
    A("s_lshr_b32 s43, s2, 6"); A("s_bfe_u32 s44, s2, 0x10005"); A("s_and_b32 s45, s2, 31")
    A(f"v_lshrrev_b32 v{vG}, 4, v{vL}")
    A(f"v_and_b32 v{vI}, 15, v{vL}")
    A(f"v_lshlrev_b32 v{vXs}, 2, v{vL}")
    A(f"v_lshrrev_b32 v{vT}, 3, v{vI}")
    A(f"v_lshl_add_u32 v{vT}, v{vT}, 2, v{vG}")
    A(f"v_and_b32 v{vT2}, 7, v{vI}")
    A(f"v_lshl_add_u32 v{vXe}, v{vT2}, 3, v{vT}")
    A(f"v_lshlrev_b32 v{vXe}, 1, v{vXe}")
    A("s_mul_i32 s51, s43, 1280")
    A("s_mul_i32 s3, s40, 320"); A("s_add_u32 s52, s51, s3")
    A(f"v_bfe_u32 v{vKo}, v{vL}, 2, 2")
    A(f"v_lshlrev_b32 v{vKo}, 8, v{vKo}")
    A(f"v_lshl_add_u32 v{vKo}, v{vG}, 6, v{vKo}")
    A(f"v_and_b32 v{vT3}, 3, v{vL}")
    A(f"v_lshl_add_u32 v{vKo}, v{vT3}, 4, v{vKo}")
    A(f"v_lshlrev_b32 v{vVo}, 4, v{vL}")
    A(f"v_lshlrev_b32 v{vT3}, 4, v{vT2}")
    A(f"v_lshl_add_u32 v{vQo}, v{vT}, 13, v{vT3}")
    A(f"v_mul_u32_u24 v{vGo}, 3456, v{vT}")
    A(f"v_add_u32 v{vGo}, v{vGo}, v{vT3}")
    A("s_lshl_b32 s46, s43, 25"); A("s_lshl_b32 s3, s41, 20"); A("s_add_u32 s46, s46, s3")
    A("s_lshl_b32 s3, s44, 14"); A("s_add_u32 s46, s46, s3"); A("s_lshl_b32 s3, s40, 12"); A("s_add_u32 s46, s46, s3")
    A(f"s_mul_i32 s47, s40, {160 * 8192}"); A("s_lshl_b32 s3, s41, 8"); A("s_add_u32 s47, s47, s3")
    A("s_waitcnt lgkmcnt(0)")
    xs_idx = [A(f"buffer_load_dword v{TM + k}, v{vXs}, {sX}, s51 offen offset:{256 * k}") for k in range(5)]
    xe_idx = [A(f"buffer_load_ushort v{X + t}, v{vXe}, {sX}, s52 offen offset:{128 * t}") for t in range(3)]

    def kv(t, n):
        return dict(name=f"{t}{n}", srd=sK if t == "K" else sV, vo=vKo if t == "K" else vVo, base="s46", so="s53",
                    hi=(n // 4) * 32768, lo=(n % 4) * 1024)
    Kl = [kv("K", n) for n in range(128)]
    Vl = [kv("V", n) for n in range(128)]
    Ql = [dict(name=f"Q{n}", srd=sWQ, vo=vQo, base="s47", so="s54", hi=(n // 2) * 65536, lo=(n % 2) * 128) for n in range(40)]
    Gl = [dict(name=f"G{n}", srd=sWG if n % 2 == 0 else sWU, vo=vGo, base="s48", so="s55", hi=(n // 2) * 27648, lo=0) for n in range(40)]
    Ol = [dict(name=f"O{n}", srd=sWO, vo=vWOo, base="s49", so="s56", hi=(n // 10) * 2560, lo=((n // 5) % 2) * 1280 + (n % 5) * 256) for n in range(40)]
    Wl = [dict(name=f"W{n}", srd=sWD, vo=vWDo, base="s50", so="s57", hi=0, lo=(n // 5) * 1280 + (n % 5) * 256) for n in range(10)]
    kvl = Kl + Vl
    items = [(float(i), 1, x) for i, x in enumerate(kvl)]
    for (st, ev), lst in ((P.get("q", (0, 1)), Ql), (P.get("g", (46, 2)), Gl), (P.get("w", (130, 1)), Wl), (P.get("o", (141, 2.3)), Ol)):
        for i, x in enumerate(lst):
            items.append((st + i * ev - 0.001, 0, x))
    items.sort(key=lambda z: (z[0], z[1]))
    loads = [z[2] for z in items]
    pos = {x["name"]: i for i, x in enumerate(loads)}
    st = dict(issued=0, minfree=len(slots))
    slot_of, idx_of, cur_hi = {}, {}, {}

    def issue():
        x = loads[st["issued"]]
        if not slots:
            return False
        if cur_hi.get(x["so"]) != x["hi"]:
            A(f"s_add_u32 {x['so']}, {x['base']}, {x['hi']}")
            cur_hi[x["so"]] = x["hi"]
        sl = slots.pop(0)
        st["minfree"] = min(st["minfree"], len(slots))
        slot_of[x["name"]] = sl
        idx_of[x["name"]] = A(f"buffer_load_dwordx4 {sl}, v{x['vo']}, {x['srd']}, {x['so']} offen offset:{x['lo']} nt")
        st["issued"] += 1
        return True

    def use(name):
        A.wait_vm(idx_of[name])
        return slot_of[name]

    def free(name):
        slots.append(slot_of.pop(name))

    flags = set()
    aa = [0]

    def nextA():
        aa[0] ^= 1
        return AA[aa[0]]

    def rb(d, s):
        A(f"v_cvt_pk_bf16_f32 v{d}, 0, v{s}")

    def row_allreduce(op, r, steps=("quad_perm:[1,0,3,2]", "quad_perm:[2,3,0,1]", "row_half_mirror", "row_mirror")):
        for s_ in steps:
            A(f"{op}_dpp v{r}, v{r}, v{r} {s_} {DPPF}")

    def wave_sum_to_sgpr(r, s):
        row_allreduce("v_add_f32", r)
        A(f"v_add_f32_dpp v{r}, v{r}, v{r} row_bcast:15 row_mask:0xa bank_mask:0xf")
        A(f"v_add_f32_dpp v{r}, v{r}, v{r} row_bcast:31 row_mask:0xc bank_mask:0xf")
        A(f"v_readlane_b32 s{s}, v{r}, 63")

    def sel_x(j):
        a = nextA()
        t, n = j >> 3, j & 7
        A(f"v_mov_b32_dpp v{vT}, v{X + t} row_newbcast:{n} row_mask:0xf bank_mask:0x3")
        A(f"v_mov_b32_dpp v{vT}, v{X + t} row_newbcast:{8 + n} row_mask:0xf bank_mask:0xc")
        for r in range(4):
            A(f"v_and_b32 v{a + r}, v{vT}, v{M + r}")
        return a

    def sel_b(src, lane, bank):
        a = nextA()
        for r in range(4):
            A(f"v_and_b32_dpp v{a + r}, v{src}, v{M + r} row_newbcast:{lane} row_mask:0xf bank_mask:{bank:#x}")
        return a

    def mfma(d, a, b, first=False):
        A(f"v_mfma_f32_16x16x32_bf16 {tup(d)}, {a}, {b}, {'0' if first else tup(d)}")

    def chain_setup():
        A(f"v_mul_u32_u24 v{vWOo}, 10240, v{vG}")
        A(f"v_lshl_add_u32 v{vWOo}, v{vI}, 4, v{vWOo}")
        A(f"v_mul_u32_u24 v{vWDo}, 2560, v{vG}")
        A(f"v_lshl_add_u32 v{vWDo}, v{vI}, 4, v{vWDo}")
        A(f"s_mul_i32 s48, s40, {160 * 3456}"); A("s_lshl_b32 s3, s45, 7"); A("s_add_u32 s48, s48, s3")
        A("s_cmp_ge_u32 s45, 27"); A("s_cselect_b32 s26, 0, s26"); A("s_cselect_b32 s30, 0, s30")
        A("s_lshl_b32 s3, s41, 2"); A("s_add_u32 s3, s3, s40"); A(f"s_mul_i32 s49, s3, {32 * 1280}")
        A("s_lshl_b32 s3, s45, 1"); A("s_add_u32 s3, s3, s44"); A("s_lshl_b32 s3, s3, 2"); A("s_add_u32 s3, s3, s40")
        A(f"s_mul_i32 s50, s3, {8 * 1280}")
        A(f"s_mov_b32 s60, {f32bits(1.4426950408889634):#x}")
        yield ("cost",)
        A(f"v_and_b32 v{vT}, 1, v{vI}")
        A(f"v_lshlrev_b32 v{vT}, 4, v{vT}")
        A(f"v_mov_b32 v{vT3}, 0xffff")
        A(f"v_lshlrev_b32 v{vT3}, v{vT}, v{vT3}")
        A(f"v_bfe_u32 v{vT}, v{vI}, 1, 2")
        for r in range(4):
            A(f"v_cmp_eq_u32 vcc, {r}, v{vT}")
            A(f"v_cndmask_b32 v{M + r}, 0, v{vT3}, vcc")
        yield ("cost",)
        for r in range(16):
            A(f"v_mov_b32 v{Bq + r}, 0")
        A(f"v_mov_b32 v{vMax}, 0xff800000")
        A(f"v_mov_b32 v{vLs}, 0")
        yield ("cost",)
        flags.add("setup")

    def chain_q():
        yield ("dep", "setup")
        yield ("pos", P.get("ln_at", 10))
        A.wait_vm(xs_idx[-1])
        f = [TM + 5 + k for k in range(10)]
        for k in range(5):
            A(f"v_lshlrev_b32 v{f[2 * k]}, 16, v{TM + k}")
            A(f"v_and_b32 v{f[2 * k + 1]}, 0xffff0000, v{TM + k}")
        A(f"v_add_f32 v{vT}, v{f[0]}, v{f[1]}")
        for k in range(2, 10):
            A(f"v_add_f32 v{vT}, v{vT}, v{f[k]}")
        wave_sum_to_sgpr(vT, 62)
        yield ("cost",)
        A(f"v_mov_b32 v{vMean}, {f32bits(1.0 / 640):#x}")
        A(f"v_mul_f32 v{vMean}, s62, v{vMean}")
        for k in range(10):
            A(f"v_sub_f32 v{f[k]}, v{f[k]}, v{vMean}")
        A(f"v_mul_f32 v{vT}, v{f[0]}, v{f[0]}")
        for k in range(1, 10):
            A(f"v_fmac_f32 v{vT}, v{f[k]}, v{f[k]}")
        wave_sum_to_sgpr(vT, 62)
        yield ("cost",)
        A(f"v_mov_b32 v{vSd}, {f32bits(1.0 / 640):#x}")
        A(f"v_mul_f32 v{vSd}, s62, v{vSd}")
        rb(vSd, vSd)
        A(f"v_add_f32 v{vSd}, {f32bits(1e-5):#x}, v{vSd}")
        rb(vSd, vSd)
        A(f"v_sqrt_f32 v{vSd}, v{vSd}")
        rb(vMean, vMean)
        rb(vSd, vSd)
        A(f"v_rcp_f32 v{vRs}, v{vSd}")
        A.wait_vm(xe_idx[-1])
        for t in range(3):
            x = X + t
            A(f"v_lshlrev_b32 v{x}, 16, v{x}")
            A(f"v_sub_f32 v{x}, v{x}, v{vMean}")
            rb(x, x)
            A(f"v_mul_f32 v{vT}, v{x}, v{vRs}")
            A(f"v_fma_f32 v{vT2}, -v{vT}, v{vSd}, v{x}")
            A(f"v_fma_f32 v{vT}, v{vT2}, v{vRs}, v{vT}")
            A(f"v_cvt_pk_bf16_f32 v{x}, v{vT}, v{vT}")
        flags.add("ln")
        yield ("cost",)
        for j in range(20):
            yield ("need", f"Q{2 * j + 1}")
            a = sel_x(j)
            for ch in range(2):
                mfma(Dq + 4 * ch, tup(a), use(f"Q{2 * j + ch}"), first=(j == 0))
                free(f"Q{2 * j + ch}")
        A(f"v_lshrrev_b32 v{vT}, 3, v{vI}")
        A(f"v_lshlrev_b32 v{vAq}, 9, v{vT}")
        A(f"v_and_b32 v{vT}, 7, v{vI}")
        A(f"v_lshl_add_u32 v{vAq}, v{vT}, 5, v{vAq}")
        A(f"v_and_b32 v{vT}, 1, v{vG}")
        A(f"v_lshl_add_u32 v{vAq}, v{vT}, 4, v{vAq}")
        A("s_lshl_b32 s3, s40, 10")
        A(f"v_add_u32 v{vAq}, s3, v{vAq}")
        A("s_mov_b32 exec_lo, 0x00ff00ff"); A("s_mov_b32 exec_hi, 0xff00ff00")
        A(f"ds_write_b128 v{vAq}, {tup(Dq)} offset:{L_QP}")
        A(f"ds_write_b128 v{vAq}, {tup(Dq + 4)} offset:{L_QP + 256}")
        A("s_mov_b64 exec, -1")
        A(f"v_lshrrev_b32 v{vT}, 2, v{vI}")
        A(f"v_lshlrev_b32 v{vT}, 10, v{vT}")
        A(f"v_lshl_add_u32 v{vT}, v{vG}, 7, v{vT}")
        A(f"v_and_b32 v{vT2}, 3, v{vI}")
        A(f"v_lshl_add_u32 v{vT}, v{vT2}, 5, v{vT}")
        yield ("cost",)
        A.wait_lgkm(0)
        A("s_barrier")
        for k, off in enumerate((0, 16, 512, 528)):
            A(f"ds_read_b128 {tup(TM + 4 * k)}, v{vT} offset:{L_QP + off}")
        yield ("cost",)
        A.wait_lgkm(0)
        for k in range(8):
            A(f"v_add_f32 v{TM + k}, v{TM + k}, v{TM + 8 + k}")
        for s_ in ("row_ror:4", "row_ror:8"):
            for k in range(8):
                A(f"v_add_f32_dpp v{TM + k}, v{TM + k}, v{TM + k} {s_} {DPPF}")
        yield ("cost",)
        for k in range(4):
            A(f"v_cvt_pk_bf16_f32 v{TM + 8 + k}, v{TM + 2 * k}, v{TM + 2 * k + 1}")
        for u in range(4):
            for k in range(4):
                A(f"v_mov_b32_dpp v{Bq + 4 * u + k}, v{TM + 8 + k} quad_perm:[0,1,2,3] row_mask:0xf bank_mask:{1 << u:#x}")
        if stamps:
            A("s_memrealtime s[72:73]")
        flags.add("q")
        yield ("cost",)

    def score_post(t):
        d = Ds[t & 1]
        s = S + t
        A(f"v_mov_b32_dpp v{s}, v{d} quad_perm:[0,0,0,0] {DPPF}")
        for k in range(1, 4):
            A(f"v_add_f32_dpp v{s}, v{d + k}, v{s} quad_perm:[{k},{k},{k},{k}] {DPPF}")
        rb(s, s)
        A(f"v_mul_f32 v{s}, {f32bits(128 ** -0.5):#x}, v{s}")
        rb(s, s)
        A(f"v_max_f32 v{vMax}, v{vMax}, v{s}")

    def chain_k():
        yield ("dep", "q")
        for t in range(32):
            yield ("need", f"K{4 * t + 3}")
            for u in range(4):
                mfma(Ds[t & 1], use(f"K{4 * t + u}"), tup(Bq + 4 * u), first=(u == 0))
                free(f"K{4 * t + u}")
            if t > 0:
                score_post(t - 1)
        score_post(31)
        flags.add("k")
        yield ("cost",)

    def chain_g():
        yield ("dep", "q")
        for j in range(20):
            yield ("need", f"G{2 * j + 1}")
            a = sel_x(j)
            for ch in range(2):
                mfma(Dg + 4 * ch, tup(a), use(f"G{2 * j + ch}"), first=(j == 0))
                free(f"G{2 * j + ch}")
        flags.add("g")
        yield ("cost",)

    def chain_main():
        yield ("dep", "k")
        yield ("dep", "g")
        row_allreduce("v_max_f32", vMax, ("row_ror:4", "row_ror:8"))
        A("s_lshl_b32 s3, s40, 4")
        A(f"v_lshl_add_u32 v{vAo}, v{vG}, 2, s3")
        A(f"ds_write_b32 v{vAo}, v{vMax} offset:{L_MX}")
        A("s_mov_b32 exec_lo, 0x00ff00ff"); A("s_mov_b32 exec_hi, 0xff00ff00")
        A(f"ds_write_b128 v{vAq}, {tup(Dg)} offset:{L_GU}")
        A(f"ds_write_b128 v{vAq}, {tup(Dg + 4)} offset:{L_GU + 256}")
        A("s_mov_b64 exec, -1")
        A(f"v_and_b32 v{vT}, 7, v{vI}")
        A(f"v_lshlrev_b32 v{vT}, 9, v{vT}")
        A(f"v_lshl_add_u32 v{vT}, v{vG}, 3, v{vT}")
        A(f"v_lshrrev_b32 v{vT2}, 3, v{vI}")
        A(f"v_lshl_add_u32 v{vT}, v{vT2}, 2, v{vT}")
        A("s_lshl_b32 s3, s44, 2"); A("s_add_u32 s3, s3, s40"); A("s_lshl_b32 s3, s3, 5"); A(f"s_add_u32 s3, s3, {L_GU}")
        A(f"v_add_u32 v{vT}, s3, v{vT}")
        A(f"v_lshlrev_b32 v{vT2}, 2, v{vI}")
        yield ("cost",)
        A.wait_lgkm(0)
        A("s_barrier")
        A(f"ds_read_b32 v{vMax}, v{vT2} offset:{L_MX}")
        A(f"ds_read2_b32 v[{TM}:{TM + 1}], v{vT} offset0:0 offset1:64")
        yield ("cost",)
        A.wait_lgkm(0)
        row_allreduce("v_max_f32", vMax)
        A(f"v_mul_f32 v{vML}, s60, v{vMax}")
        for k in range(2):
            row_allreduce("v_add_f32", TM + k, ("quad_perm:[1,0,3,2]", "quad_perm:[2,3,0,1]", "row_half_mirror"))
        g_, u_ = TM, TM + 1
        rb(g_, g_); rb(u_, u_)
        A(f"v_mul_f32 v{vT}, s60, v{g_}")
        A(f"v_exp_f32 v{vT}, -v{vT}")
        A(f"v_add_f32 v{vT}, 1.0, v{vT}")
        A(f"v_rcp_f32 v{vT}, v{vT}")
        A(f"v_mul_f32 v{g_}, v{g_}, v{vT}")
        rb(g_, g_)
        A(f"v_mul_f32 v{g_}, v{g_}, v{u_}")
        A(f"v_cvt_pk_bf16_f32 v{TM + 2}, v{g_}, v{g_}")
        if stamps:
            A("s_memrealtime s[74:75]")
        yield ("cost",)
        for r in range(8):
            A(f"v_mov_b32 v{TM + 4 + r}, 0")
        for j in range(2):
            for r in range(4):
                A(f"v_and_b32_dpp v{TM + 4 + 4 * j + r}, v{TM + 2}, v{M + r} row_newbcast:{8 * j} row_mask:0xf bank_mask:0xc")
        flags.add("p")
        yield ("cost",)
        for j in range(2):
            yield ("need", f"W{5 * j + 4}")
            for t in range(5):
                mfma(Dy + 4 * t, tup(TM + 4 + 4 * j), use(f"W{5 * j + t}"), first=(j == 0))
                free(f"W{5 * j + t}")
        flags.add("f")
        yield ("cost",)

    def chain_v():
        yield ("dep", "p")
        for t in range(32):
            s = S + t
            yield ("need", f"V{4 * t}")
            A(f"v_fma_f32 v{s}, v{s}, s60, -v{vML}")
            A(f"v_exp_f32 v{s}, v{s}")
            A(f"v_add_f32 v{vLs}, v{vLs}, v{s}")
            A(f"v_cvt_pk_bf16_f32 v{s}, v{s}, v{s}")
            if t == 31:
                row_allreduce("v_add_f32", vLs, ("row_ror:4", "row_ror:8"))
                A(f"ds_write_b32 v{vAo}, v{vLs} offset:{L_LS}")
                A(f"v_lshlrev_b32 v{vT}, 5, v{vI}")
                A(f"v_lshl_add_u32 v{vT}, v{vG}, 4, v{vT}")
                A("s_lshl_b32 s3, s40, 9")
                A(f"v_add_u32 v{vT}, s3, v{vT}")
                A(f"v_lshrrev_b32 v{vT2}, 3, v{vI}")
                A(f"v_lshlrev_b32 v{vT2}, 10, v{vT2}")
                A(f"v_lshl_add_u32 v{vT2}, v{vG}, 5, v{vT2}")
                A(f"v_and_b32 v{vT3}, 7, v{vI}")
                A(f"v_lshl_add_u32 v{vT2}, v{vT3}, 2, v{vT2}")
                A("s_lshl_b32 s3, s40, 7"); A(f"s_add_u32 s3, s3, {L_OP}")
                A(f"v_add_u32 v{vT2}, s3, v{vT2}")
                A(f"v_lshlrev_b32 v{vT3}, 2, v{vI}")
                A(f"v_lshrrev_b32 v{vAy}, 1, v{vG}")
                A(f"v_mul_u32_u24 v{vAy}, 2560, v{vAy}")
                A(f"v_and_b32 v{vAq}, 1, v{vG}")
                A(f"v_lshl_add_u32 v{vAy}, v{vAq}, 8, v{vAy}")
                A(f"v_lshl_add_u32 v{vAy}, v{vI}, 4, v{vAy}")
                A("s_mul_i32 s3, s40, 5120")
                A(f"v_add_u32 v{vAy}, s3, v{vAy}")
                for r in range(8):
                    A(f"v_mov_b32 v{Bq + r}, 0")
            for u in range(4):
                yield ("need", f"V{4 * t + u}")
                a = sel_b(s, 4 * u, 0xf)
                mfma(Do, tup(a), use(f"V{4 * t + u}"), first=(t == 0 and u == 0))
                free(f"V{4 * t + u}")
        flags.add("v")
        yield ("cost",)

    chains = [chain_setup(), chain_q(), chain_main(), chain_k(), chain_g(), chain_v()]
    pending = [None] * len(chains)
    done = [False] * len(chains)

    def ready(req):
        if req is None or req[0] == "cost":
            return True
        if req[0] == "dep":
            return req[1] in flags
        if req[0] == "pos":
            return st["issued"] >= req[1]
        if req[0] == "need":
            p = pos[req[1]]
            return st["issued"] >= min(p + D, len(loads)) or (st["issued"] > p and not slots)
        raise ValueError(req)

    BUDGET = P.get("budget", 24)
    for _ in range(P.get("first", 4)):
        issue()
    while not all(done):
        progressed = False
        if st["issued"] < len(loads):
            progressed = issue()
        start = len(A.lines)
        while len(A.lines) - start < BUDGET or st["issued"] >= len(loads):
            ran = False
            for ci, ch in enumerate(chains):
                if done[ci] or not ready(pending[ci]):
                    continue
                try:
                    pending[ci] = next(ch)
                except StopIteration:
                    done[ci] = True
                ran = True
                break
            if not ran:
                break
            progressed = True
        assert progressed, "scheduler stuck"
    assert st["issued"] == len(loads)

    if stamps:
        A("s_memrealtime s[76:77]")
    A("s_mov_b32 exec_hi, 0")
    A(f"ds_write_b128 v{vT}, {tup(Do)} offset:{L_OP}")
    A("s_mov_b32 exec_hi, -1")
    A.wait_lgkm(0)
    A("s_barrier")
    A(f"ds_read2_b32 v[{TM}:{TM + 1}], v{vT2} offset0:0 offset1:128")
    A(f"ds_read_b32 v{vLs}, v{vT3} offset:{L_LS}")
    A.wait_lgkm(1)
    A(f"v_add_f32 v{TM}, v{TM}, v{TM + 1}")
    A(f"v_add_f32_dpp v{TM}, v{TM}, v{TM} row_ror:8 {DPPF}")
    A(f"v_cvt_pk_bf16_f32 v{TM}, v{TM}, v{TM}")
    for j in range(8):
        a = Bq + 4 * (j & 1)
        for r in range(4):
            A(f"v_and_b32_dpp v{a + r}, v{TM}, v{M + r} row_newbcast:{j} row_mask:0xf bank_mask:0x3")
        for t in range(5):
            mfma(Dy + 4 * t, tup(a), use(f"O{5 * j + t}"))
        if j == 0:
            A.wait_lgkm(0)
            row_allreduce("v_add_f32", vLs)
        if j == 1:
            A("s_lshl_b32 s58, s43, 6"); A("s_lshl_b32 s3, s41, 1"); A("s_add_u32 s58, s58, s3"); A("s_add_u32 s58, s58, s44")
            A("s_lshl_b32 s3, s58, 3"); A(f"s_add_u32 s3, s3, {ML_OFF}")
            A(f"v_mov_b32 v{TM + 2}, v{vMax}"); A(f"v_mov_b32 v{TM + 3}, v{vLs}")
            A("s_cmp_lg_u32 s40, 0")
            A("s_cbranch_scc1 L_k1_noml")
            A("s_mov_b64 exec, 1")
            A(f"buffer_store_dwordx2 v[{TM + 2}:{TM + 3}], off, {sWS}, s3")
            A("s_mov_b64 exec, -1")
            A.label("L_k1_noml")
        if j == 2:
            A("s_mul_i32 s3, s40, 80")
            A(f"v_add_u32 v{vT}, s3, v{vL}")
            A(f"v_add_u32 v{vT2}, 64, v{vT}")
        if j in (3, 4):
            it = vT if j == 3 else vT2
            go = TM + 4 + (j - 3)
            A(f"v_lshrrev_b32 v{go}, 5, v{it}")
            A(f"v_lshlrev_b32 v{go}, 9, v{go}")
            A(f"v_and_b32 v{vT3}, 15, v{it}")
            A(f"v_lshl_add_u32 v{go}, v{vT3}, 5, v{go}")
            A(f"v_and_b32 v{vT3}, 16, v{it}")
            A(f"v_add_u32 v{go}, v{go}, v{vT3}")
            A(f"v_lshlrev_b32 v{it}, 4, v{it}")
        if j == 5:
            A("s_mul_i32 s59, s58, 5120")
    for t in range(5):
        A(f"ds_write_b128 v{vAy}, {tup(Dy + 4 * t)} offset:{L_YP + 512 * t}")
    A.wait_lgkm(0)
    A("s_barrier")
    RA, RB = S, S + 16
    for k in range(4):
        A(f"ds_read_b128 {tup(RA + 4 * k)}, v{vT} offset:{L_YP + 5120 * k}")
    A("s_mov_b64 exec, 0xffff")
    for k in range(4):
        A(f"ds_read_b128 {tup(RB + 4 * k)}, v{vT2} offset:{L_YP + 5120 * k}")
    A("s_mov_b64 exec, -1")
    for R, wn, go, ex in ((RA, 4, TM + 4, None), (RB, 0, TM + 5, "0xffff")):
        A.wait_lgkm(wn)
        for k in range(0, 4, 2):
            A(f"v_pk_add_f32 v[{R + k}:{R + k + 1}], v[{R + k}:{R + k + 1}], v[{R + 4 + k}:{R + 5 + k}]")
            A(f"v_pk_add_f32 v[{R + 8 + k}:{R + 9 + k}], v[{R + 8 + k}:{R + 9 + k}], v[{R + 12 + k}:{R + 13 + k}]")
        for k in range(0, 4, 2):
            A(f"v_pk_add_f32 v[{R + k}:{R + k + 1}], v[{R + k}:{R + k + 1}], v[{R + 8 + k}:{R + 9 + k}]")
        if ex:
            A(f"s_mov_b64 exec, {ex}")
        A(f"buffer_store_dwordx4 {tup(R)}, v{go}, {sWS}, s59 offen")
    if stamps:
        A("s_mov_b64 exec, 1")
        A("s_waitcnt vmcnt(0)")
        A("s_memrealtime s[78:79]")
        A("s_waitcnt lgkmcnt(0)")
        A("s_getreg_b32 s3, hwreg(HW_REG_XCC_ID)")
        for k, s_ in enumerate((70, 72, 74, 76, 78, 3)):
            A(f"v_mov_b32 v{TM + k}, s{s_}")
        A("s_lshl_b32 s3, s2, 2"); A("s_add_u32 s3, s3, s40"); A("s_lshl_b32 s3, s3, 5"); A(f"s_add_u32 s3, s3, {STAMP_OFF}")
        A(f"buffer_store_dwordx4 {tup(TM)}, off, {sWS}, s3")
        A(f"buffer_store_dwordx2 v[{TM + 4}:{TM + 5}], off, {sWS}, s3 offset:16")
    A.label("L_k1_end")
    A("s_endpgm")
    sys.stderr.write(f"k1: slots {nslots0}, min free {st['minfree']}, loads {len(loads)}, nops {A.nops}, lines {len(A.lines)}\n")


def gen_k2(A, P):
    A("s_cmp_ge_u32 s2, 80")
    A("s_cbranch_scc1 L_k2_end")
    A("s_load_dwordx2 s[4:5], s[0:1], 88")
    A("s_load_dwordx2 s[8:9], s[0:1], 0")
    A("s_load_dwordx2 s[12:13], s[0:1], 72")
    A(f"s_mov_b32 s6, {WS_BYTES}"); A("s_mov_b32 s7, 0x20000")
    A("s_mov_b32 s10, 5120"); A("s_mov_b32 s11, 0x20000")
    A("s_mov_b32 s14, 5120"); A("s_mov_b32 s15, 0x20000")
    A("s_mul_i32 s16, s2, 3277"); A("s_lshr_b32 s16, s16, 16")
    A("s_mul_i32 s3, s16, 20"); A("s_sub_u32 s17, s2, s3")
    A("v_readfirstlane_b32 s23, v0")
    A("v_lshrrev_b32 v1, 3, v0")
    A("v_and_b32 v2, 7, v0")
    A("v_mul_u32_u24 v3, 10240, v1")
    A("v_lshl_add_u32 v3, v2, 4, v3")
    A("v_lshlrev_b32 v4, 4, v1")
    A(f"s_mul_i32 s18, s16, {64 * 5120}"); A("s_lshl_b32 s3, s17, 7"); A("s_add_u32 s18, s18, s3")
    A("s_add_u32 s19, s18, 5120")
    A("s_lshl_b32 s20, s16, 9"); A(f"s_add_u32 s20, s20, {ML_OFF}")
    A("v_and_b32 v5, 31, v0"); A("v_lshlrev_b32 v5, 1, v5")
    A("s_mul_i32 s21, s16, 1280"); A("s_lshl_b32 s3, s17, 6"); A("s_add_u32 s21, s21, s3")
    A("s_waitcnt lgkmcnt(0)")
    A("buffer_load_dwordx4 v[8:11], v4, s[4:7], s20 offen")
    A("buffer_load_dwordx4 v[12:15], v3, s[4:7], s18 offen")
    A("buffer_load_dwordx4 v[16:19], v3, s[4:7], s19 offen")
    A("buffer_load_dwordx4 v[20:23], v3, s[4:7], s18 offen offset:2560")
    A("buffer_load_dwordx4 v[24:27], v3, s[4:7], s19 offen offset:2560")
    A("buffer_load_ushort v6, v5, s[8:11], s21 offen")
    A(f"s_mov_b32 s22, {f32bits(1.4426950408889634):#x}")
    A("v_lshrrev_b32 v7, 4, v0"); A("v_lshlrev_b32 v7, 8, v7"); A("v_lshl_add_u32 v7, v2, 4, v7")
    A("s_waitcnt vmcnt(5)")
    A("v_max_f32 v28, v8, v10")
    A("v_sub_f32 v8, v8, v28"); A("v_sub_f32 v10, v10, v28")
    A("v_mul_f32 v8, s22, v8"); A("v_mul_f32 v10, s22, v10")
    A("v_exp_f32 v8, v8"); A("v_exp_f32 v10, v10")
    A("v_mul_f32 v28, v8, v9")
    A("v_fmac_f32 v28, v10, v11")
    A("v_rcp_f32 v28, v28")
    A("v_mul_f32 v8, v8, v28"); A("v_mul_f32 v10, v10, v28")
    A("s_waitcnt vmcnt(3)")
    for k in range(4):
        A(f"v_mul_f32 v{12 + k}, v8, v{12 + k}")
        A(f"v_fmac_f32 v{12 + k}, v10, v{16 + k}")
    A("s_waitcnt vmcnt(1)")
    for k in range(4):
        A(f"v_add_f32 v{16 + k}, v{20 + k}, v{24 + k}")
    for k in range(8):
        A(f"v_add_f32_dpp v{12 + k}, v{12 + k}, v{12 + k} row_ror:8 {DPPF}")
    A("ds_write_b128 v7, v[12:15]")
    A("ds_write_b128 v7, v[16:19] offset:128")
    A("v_lshlrev_b32 v7, 2, v0")
    A("s_waitcnt lgkmcnt(0)")
    A("s_barrier")
    A("s_cmp_ge_u32 s23, 64")
    A("s_cbranch_scc1 L_k2_end")
    for k in range(8):
        A(f"ds_read2st64_b32 v[{8 + 2 * k}:{9 + 2 * k}], v7 offset0:{2 * k} offset1:{2 * k + 1}")
    A("s_waitcnt lgkmcnt(0)")
    for k in range(0, 8, 2):
        A(f"v_pk_add_f32 v[{8 + k}:{9 + k}], v[{8 + k}:{9 + k}], v[{16 + k}:{17 + k}]")
    A("v_pk_add_f32 v[8:9], v[8:9], v[12:13]")
    A("v_pk_add_f32 v[10:11], v[10:11], v[14:15]")
    A("v_pk_add_f32 v[8:9], v[8:9], v[10:11]")
    A("v_add_f32 v8, v8, v9")
    A("v_cvt_pk_bf16_f32 v8, 0, v8")
    A("v_mov_b32 v9, v8")
    A("v_permlane32_swap_b32 v8, v9")
    A("s_waitcnt vmcnt(0)")
    A("v_lshlrev_b32 v6, 16, v6")
    A("v_add_f32 v8, v8, v6")
    A("v_cvt_pk_bf16_f32 v8, 0, v8")
    A("v_add_f32 v8, v8, v9")
    A("v_cvt_pk_bf16_f32 v8, v8, v8")
    A("s_mov_b32 exec_hi, 0")
    A("buffer_store_short v8, v5, s[12:15], s21 offen")
    A.label("L_k2_end")
    A("s_endpgm")


def desc(name, nv, acc, ns):
    return f""".amdhsa_kernel {name}
  .amdhsa_next_free_vgpr {nv}
  .amdhsa_next_free_sgpr {ns}
  .amdhsa_accum_offset {acc}
  .amdhsa_group_segment_fixed_size 0
  .amdhsa_kernarg_size 96
  .amdhsa_user_sgpr_count 2
  .amdhsa_user_sgpr_kernarg_segment_ptr 1
  .amdhsa_system_sgpr_workgroup_id_x 1
  .amdhsa_float_denorm_mode_32 3
.end_amdhsa_kernel
"""


def generate(path, **P):
    out = HEADER
    out += f"; @launch kernel={KN} grid=(256,1,1) block=(256,1,1) lds={LDS_BYTES}\n"
    if not P.get("nok2"):
        out += f"; @launch kernel={K2N} grid=(80,1,1) block=(256,1,1) lds=4096\n"
    out += '.amdgcn_target "amdgcn-amd-amdhsa--gfx950"\n.text\n'
    out += f".globl {KN}\n.p2align 8\n.type {KN},@function\n{KN}:\n"
    A = Asm(); gen_k1(A, P); out += A.text()
    out += f".globl {K2N}\n.p2align 8\n.type {K2N},@function\n{K2N}:\n"
    A = Asm(); gen_k2(A, P); out += A.text()
    out += '.section .rodata,"a"\n.p2align 6\n' + desc(KN, 512, 256, 96) + ".p2align 6\n" + desc(K2N, 32, 32, 32)
    open(path, "w").write(out)


if __name__ == "__main__":
    generate(sys.argv[1] if len(sys.argv) > 1 else "parallel_sum__mha_block_cached__swiglu_ffn__decode.s")
```
